```python
import torch

def _softmax(x, axis=-1):
    return torch.softmax(x, dim=axis)
def _gelu(x):
    return torch.nn.functional.gelu(x, approximate="tanh")
def _silu(x):
    return torch.nn.functional.silu(x)
def _sigmoid(x):
    return torch.sigmoid(x)
def _layernorm(x, axis=-1, eps=1e-5):
    m = x.mean(dim=axis, keepdim=True)
    v = x.var(dim=axis, keepdim=True, unbiased=False)
    return (x - m) / torch.sqrt(v + eps)
def _scatter_add(tgt, idx, src, axis=0):
    return tgt.clone().index_add_(axis, idx, src)
def _segment_sum(src, seg, n):
    out = torch.zeros((n,) + src.shape[1:], dtype=src.dtype)
    return out.index_add_(0, seg, src)
def _pad(x, pw):
    flat = tuple(v for pair in reversed(pw) for v in pair)
    return torch.nn.functional.pad(x, flat)

kernel_name = 'standalone__cross_network_dcn__recsys'

def setup_inputs():

    _w = (lambda a: (lambda t: t.to(torch.bfloat16) if t.is_floating_point() else t)(torch.as_tensor(a)))
    B, F, D, L = 1024, 26, 32, 6
    Din = min(F * D, 1024)
    return {
        "x0": _w((lambda *s: torch.randn(*s, dtype=torch.bfloat16) * 0.05)(B, Din)),
        "ws": _w((lambda *s: torch.randn(*s, dtype=torch.bfloat16) * 0.8)(L, Din, Din) * (Din ** -0.5)),
        "bs": _w((lambda *s: torch.randn(*s, dtype=torch.bfloat16) * 3.2)(L, Din) * 0.01),
    }

def reference(x0, ws, bs):
    x = x0
    L = ws.shape[0]
    for l in range(L):
        proj = torch.einsum('bd,de->be', x, ws[l]) + bs[l]
        x = x0 * proj + x
    return x
```

```python
import re

def regs(tok):
    tok = tok.strip()
    m = re.fullmatch(r'([vas])\[(\d+):(\d+)\]', tok)
    if m:
        return [(m.group(1), i) for i in range(int(m.group(2)), int(m.group(3)) + 1)]
    m = re.fullmatch(r'([vas])(\d+)', tok)
    if m:
        return [(m.group(1), int(m.group(2)))]
    if tok in ('vcc', 'exec', 'm0', 'scc'):
        return [(tok, 0)]
    if tok in ('vcc_lo', 'vcc_hi'):
        return [('vcc', 0)]
    if tok in ('exec_lo', 'exec_hi'):
        return [('exec', 0)]
    return []

class Ins:
    def __init__(self, text):
        self.text = text
        t = text.split(';')[0].strip()
        self.wr = set(); self.rd = set(); self.srcc = set(); self.sdata = set()
        self.kind = 'other'; self.states = 1
        self.lds_dma = False
        if t.endswith(':') or t.startswith('.') or t == '':
            self.kind = 'label'; self.states = 0; self.op = t
            return
        parts = t.split(None, 1)
        op = parts[0]; self.op = op
        rest = parts[1] if len(parts) > 1 else ''
        ops = [x.strip() for x in rest.split(',')] if rest else []
        toks = []
        for o in ops:
            toks.append(o.split()[0] if o.split() else o)
        if op == 's_nop':
            self.kind = 'nop'; self.states = int(rest) + 1
        elif op.startswith('v_mfma'):
            self.kind = 'mfma'
            self.wr.update(regs(toks[0]))
            self.rd.update(regs(toks[1])); self.rd.update(regs(toks[2]))
            self.srcc.update(regs(toks[3])); self.rd.update(regs(toks[3]))
            self.dstr = toks[0]; self.cstr = toks[3]
        elif op.startswith('v_'):
            self.kind = 'valu'
            self.wr.update(regs(toks[0]))
            for x in toks[1:]:
                self.rd.update(regs(x))
            if op.startswith('v_cndmask') and len(toks) == 3:
                self.rd.add(('vcc', 0))
            if op.startswith('v_writelane') or op.startswith('v_fmac') or op.startswith('v_pk_fmac'):
                self.rd.update(regs(toks[0]))
            if op.startswith('v_permlane'):
                self.wr.update(regs(toks[1])); self.rd.update(regs(toks[0]))
        elif op.startswith('buffer_') or op.startswith('global_'):
            self.kind = 'vmem'
            if ' lds' in (' ' + rest):
                self.lds_dma = True
                self.rd.add(('m0', 0))
                for x in toks: self.rd.update(regs(x))
            elif 'store' in op or 'atomic' in op:
                self.sdata.update(regs(toks[0]))
                for x in toks: self.rd.update(regs(x))
            else:
                self.wr.update(regs(toks[0]))
                for x in toks[1:]: self.rd.update(regs(x))
        elif op.startswith('ds_'):
            self.kind = 'ds'
            if 'write' in op:
                for x in toks: self.rd.update(regs(x))
                self.sdata.update(regs(toks[1]))
            else:
                self.wr.update(regs(toks[0]))
                for x in toks[1:]: self.rd.update(regs(x))
        elif op.startswith('s_load') or op.startswith('s_memtime') or op.startswith('s_memrealtime'):
            self.kind = 'smem'
            self.wr.update(regs(toks[0]))
            for x in toks[1:]: self.rd.update(regs(x))
        elif op.startswith('s_waitcnt') or op == 's_barrier' or op == 's_endpgm' or op == 's_sleep' or op == 's_setprio':
            self.kind = 'ctl'
        elif op.startswith('s_cbranch') or op == 's_branch' or op.startswith('s_setpc') or op.startswith('s_swappc'):
            self.kind = 'branch'
            if 'vcc' in op: self.rd.add(('vcc', 0))
        elif op.startswith('s_'):
            self.kind = 'salu'
            if op.startswith('s_cmp') or op.startswith('s_bitcmp'):
                for x in toks: self.rd.update(regs(x))
            else:
                self.wr.update(regs(toks[0]))
                for x in toks[1:]: self.rd.update(regs(x))
                if 'saveexec' in op:
                    self.wr.add(('exec', 0))

def isv(r): return r[0] in ('v', 'a')
def iss(r): return r[0] in ('s', 'vcc')

def need(prev, cur):
    n = 0
    if prev.kind == 'valu':
        w = prev.wr
        wv = {r for r in w if isv(r)}
        ws = {r for r in w if iss(r)}
        if cur.kind == 'mfma' and wv & cur.rd: n = max(n, 2)
        if cur.kind == 'valu' and (cur.op.startswith('v_readlane') or cur.op.startswith('v_readfirstlane')) and wv & cur.rd: n = max(n, 1)
        if cur.kind == 'valu' and cur.op.startswith('v_permlane') and wv & (cur.rd | cur.wr): n = max(n, 2)
        if cur.kind == 'vmem' and ws & cur.rd: n = max(n, 5)
        if cur.kind == 'valu' and ws & cur.rd:
            n = max(n, 4 if (cur.op.startswith('v_readlane') or cur.op.startswith('v_writelane')) else 2)
        if ('exec', 0) in w and cur.kind == 'mfma': n = max(n, 4)
        if cur.kind == 'valu' and 'dpp' in cur.text and wv & cur.rd: n = max(n, 2)
    if prev.kind == 'mfma':
        d = prev.wr
        if cur.kind in ('valu', 'vmem', 'ds') and d & (cur.rd | cur.wr): n = max(n, 12)
        if cur.kind == 'mfma':
            if d & (cur.rd - cur.srcc): n = max(n, 12)
            ab = set()
            if d & cur.srcc and cur.cstr != prev.dstr: n = max(n, 10)
            if d & cur.wr and cur.cstr != prev.dstr and not (d & cur.srcc): n = max(n, 10)
        if cur.kind == 'valu' and prev.srcc & cur.wr: n = max(n, 7)
        if cur.kind in ('vmem', 'ds') and prev.srcc & cur.wr: n = max(n, 7)
    if prev.kind == 'salu':
        if ('m0', 0) in prev.wr and cur.lds_dma: n = max(n, 1)
        if ('exec', 0) in prev.wr and cur.kind == 'mfma': n = max(n, 4)
    if prev.kind in ('vmem', 'ds') and len(prev.sdata) >= 3:
        if cur.kind == 'valu' and prev.sdata & cur.wr: n = max(n, 2)
    return n

def pad(lines):
    out = []
    for ln in lines:
        cur = Ins(ln)
        if cur.kind != 'label':
            dist = 0; req = 0
            for p in reversed(out):
                if dist >= 12: break
                if p.kind != 'label':
                    r = need(p, cur) - dist
                    req = max(req, r)
                dist += p.states
            while req > 0:
                k = min(req, 8)
                out.append(Ins(f's_nop {k-1}'))
                req -= k
        out.append(cur)
    return [i.text for i in out]

class Emit:
    def __init__(self):
        self.L = []
        self.vm = []
        self.lg = []
        self.smem = False
        self.on_lg0 = []
    def __call__(self, t):
        self.L.append(t)
    def vmem(self, t, tag):
        self.L.append(t); self.vm.append(tag)
        self.maxvm = max(getattr(self,'maxvm',0), len(self.vm))
    def ds(self, t, tag):
        self.L.append(t); self.lg.append(tag)
    def _cnt(self, q, tags):
        idx = -1
        for i, x in enumerate(q):
            if x in tags: idx = i
        return idx
    def wait(self, vm=(), lg=()):
        if isinstance(vm, str): vm = (vm,)
        if isinstance(lg, str): lg = (lg,)
        s = []
        if vm == ('*',):
            if self.vm: s.append('vmcnt(0)')
            self.vm = []
        elif vm:
            i = self._cnt(self.vm, vm)
            if i >= 0:
                n = min(len(self.vm) - 1 - i, 63)
                s.append(f'vmcnt({n})')
                self.vm = self.vm[len(self.vm) - n:] if n else []
        zero = False
        if lg == ('*',):
            if self.lg or self.smem: s.append('lgkmcnt(0)'); zero = True
            self.lg = []
        elif lg:
            i = self._cnt(self.lg, lg)
            if i >= 0:
                n = min(len(self.lg) - 1 - i, 15)
                if self.smem: n = 0
                s.append(f'lgkmcnt({n})')
                self.lg = self.lg[len(self.lg) - n:] if n else []
                zero = (n == 0)
        if s:
            self.L.append('s_waitcnt ' + ' '.join(s))
        if zero:
            self.smem = False
            cb = self.on_lg0; self.on_lg0 = []
            for f in cb: f()
```

```python
import sys
sys.path.insert(0, 'gen')
from asmlib import *

NAME = 'standalone__cross_network_dcn__recsys'
TS = '--ts' in sys.argv
OUT = [a for a in sys.argv[1:] if a.endswith('.s')]
OUT = OUT[0] if OUT else f'cdna_kernels/{NAME}.s'

NL = 6
S2 = 106496
REG = 1703936
WL = 1384448
TSOFF = 5 * REG

vWa, vWb, vT0, vT1, vXd, vX0r = 1, 2, 3, 4, 5, 6
vEw = [None, 7, 8, 9]; vEr = 10
vXl, vXs, vXp, vOut, vBias, vM = 11, 12, 245, 13, 14, 15
vP = 16; vBr = 20; vBC = 24
def x0f(k, r): return 40 + 8 * k + r
def xf(k, r): return 56 + 8 * k + r
def acc(k, t, r=0): return 72 + 32 * k + 16 * t + r
def XF(k, i, r=0): return 136 + 52 * k + 4 * i + r
vF = 240; vTS = 244; vTmp = 246
def vr(a, n): return f'v[{a}:{a+n-1}]'
def ar(a, n): return f'a[{a}:{a+n-1}]'
sX0, sW, sB, sO, sD, sWS = 's[4:7]', 's[8:11]', 's[12:15]', 's[16:19]', 's[20:23]', 's[24:27]'
sw, sc, srg, sq = 28, 29, 30, 31
def tX(i): return f's{32+i}'
def tW(i): return f's{45+i}'
def t0(i): return f's{58+i}'
sMW, sM0, sRC = 71, 72, 73
sRet = 's[74:75]'
sFl, sCh = 76, 77
TSP = [80, 82, 84, 86, 88, 90]

e = Emit()
stubs = []
ts_names = []
ts_free = list(TSP)
def ts(name):
    if not TS: return
    if not ts_free:
        e.wait(lg='*')
    p = ts_free.pop(0)
    idx = len(ts_names); ts_names.append(name)
    assert idx < 64
    e(f's_memtime s[{p}:{p+1}]'); e.smem = True
    def cb(p=p, idx=idx):
        e(f'v_writelane_b32 v{vTS}, s{p}, {idx}')
        ts_free.append(p)
    e.on_lg0.append(cb)

def prologue():
    e('s_cmp_ge_u32 s2, 208')
    e('s_cbranch_scc1 END')
    for k, off in ((4, 0), (8, 8), (24, 40), (12, 16), (20, 32), (16, 24)):
        e(f's_load_dwordx2 s[{k}:{k+1}], s[0:1], {off}')
    e.smem = True
    if TS:
        e('s_memrealtime s[92:93]')
    ts('start')
    e('v_lshrrev_b32 v1, 6, v0')
    e('v_and_b32 v0, 63, v0')
    e(f'v_readfirstlane_b32 s{sw}, v1')
    e('s_and_b32 s3, s2, 1')
    e('s_mul_i32 s3, s3, 26')
    e('s_lshr_b32 s29, s2, 3')
    e('s_add_u32 s3, s3, s29')
    e(f's_lshr_b32 s{sc}, s3, 2')
    e(f's_and_b32 s{sq}, s3, 3')
    e('s_and_b32 s3, s2, 6')
    e('s_lshl_b32 s3, s3, 1')
    e(f's_add_u32 s{srg}, s3, s{sq}')
    for k, n in ((4, 1703936), (8, 8306688), (12, 9984), (16, 1703936), (20, 256), (24, 5 * REG + (1 << 20 if TS else 0))):
        e(f's_mov_b32 s{k+2}, {n}')
        e(f's_mov_b32 s{k+3}, 0x20000')
    e(f's_mul_i32 s3, s{sq}, 3')
    e('s_sub_u32 s3, s3, 1')
    e('v_add_u32 v2, s3, v0')
    e('v_subrev_u32 v3, 12, v2')
    e('v_min_u32 v2, v2, v3')
    e(f's_add_u32 s3, s{sc}, 1')
    e('v_add_u32 v2, s3, v2')
    e('v_subrev_u32 v3, 13, v2')
    e('v_min_u32 v2, v2, v3')
    e('v_lshlrev_b32 v2, 7, v2')
    e(f's_lshl_b32 {t0(0)}, s{sc}, 7')
    for i in range(1, 13):
        e(f'v_readlane_b32 {t0(i)}, v2, {i}')
    e('v_lshrrev_b32 v16, 3, v0')
    e('v_and_b32 v17, 7, v0')
    e('v_and_b32 v18, 31, v0')
    e('v_lshrrev_b32 v19, 5, v0')
    e(f's_movk_i32 s3, 1664')
    e(f's_lshl_b32 s74, s{sw}, 3')
    e('v_add_u32 v20, s74, v16')
    e('v_lshrrev_b32 v21, 1, v20')
    e('v_and_b32 v21, 7, v21')
    e('v_xor_b32 v21, v21, v17')
    e('v_lshlrev_b32 v21, 4, v21')
    e(f's_lshl_b32 s75, s{srg}, 6')
    e('v_add_u32 v20, s75, v20')
    e('v_mul_lo_u32 v20, v20, s3')
    e(f'v_add_u32 v{vXd}, v20, v21')
    e(f's_lshl_b32 s{sM0}, s{sw}, 10')
    e(f's_add_u32 s{sM0}, s{sM0}, {S2}')
    e(f's_mul_i32 s74, s{srg}, 106496')
    e(f's_lshl_b32 s75, s{sw}, 11')
    e('s_add_u32 s74, s74, s75')
    e('v_lshlrev_b32 v22, 4, v0')
    e(f'v_add_u32 v{vXs}, s74, v22')
    e(f'v_mov_b32 v{vXl}, v{vXs}')
    e(f'v_add_u32 v{vXp}, {REG}, v{vXs}')
    e(f's_lshl_b32 s74, s{sw}, 4')
    e('v_add_u32 v20, s74, v16')
    e('v_mul_lo_u32 v20, v20, s3')
    e('v_lshlrev_b32 v21, 1, v16')
    e('v_and_b32 v21, 4, v21')
    e('v_xor_b32 v21, v21, v17')
    e('v_lshlrev_b32 v21, 4, v21')
    e('v_add_u32 v20, v20, v21')
    e(f'v_add_u32 v{vWa}, {t0(0)}, v20')
    e(f'v_add_u32 v{vWb}, {13312-1024}, v{vWa}')
    e(f's_mul_i32 s{sMW}, s{sw}, 26624')
    for i in range(13):
        e(f's_mul_i32 {tW(i)}, {t0(i)}, 832')
        e(f's_lshl_b32 {tX(i)}, {t0(i)}, 6')
    e(f's_lshl_b32 s74, s{sw}, 11')
    e(f's_add_u32 s74, s74, {S2}')
    e(f'v_add_u32 v{vEr}, s74, v22')
    assert S2 % 8192 == 0
    for s in (1, 2, 3):
        e(f'v_xor_b32 v{vEw[s]}, {s << 11}, v{vEr}')
    e(f's_lshl_b32 s74, s{sw}, 1')
    e('v_add_u32 v20, s74, v19')
    e('v_lshrrev_b32 v21, 1, v18')
    e('v_and_b32 v21, 7, v21')
    e('v_xor_b32 v21, v21, v20')
    e('v_lshlrev_b32 v21, 4, v21')
    e('v_lshlrev_b32 v23, 7, v18')
    e('v_add_u32 v21, v21, v23')
    e(f'v_add_u32 v{vX0r}, {S2}, v21')
    e('v_lshlrev_b32 v20, 4, v20')
    e(f'v_add_u32 v{vBias}, {t0(0)}, v20')
    e(f's_lshl_b32 s75, s{srg}, 6')
    e('v_add_u32 v21, s75, v18')
    e('v_mul_lo_u32 v21, v21, s3')
    e(f'v_add_u32 v{vOut}, v21, v{vBias}')
    e('v_lshrrev_b32 v20, 4, v0')
    e('v_and_b32 v20, 1, v20')
    e(f'v_xor_b32 v20, s{sw}, v20')
    e('v_lshlrev_b32 v20, 5, v20')
    e('v_and_b32 v21, 1, v0')
    e('v_lshlrev_b32 v21, 4, v21')
    e('v_and_b32 v23, 2, v0')
    e('v_lshlrev_b32 v23, 2, v23')
    e('v_add3_u32 v20, v20, v21, v23')
    e('v_and_b32 v21, 8, v0')
    e('v_lshlrev_b32 v21, 3, v21')
    e('v_xor_b32 v20, v20, v21')
    e('v_bfe_u32 v21, v0, 2, 2')
    e('v_lshl_add_u32 v21, v19, 3, v21')
    e('v_lshlrev_b32 v21, 7, v21')
    e(f'v_add3_u32 v{vT0}, v20, v21, s{sMW}')
    e(f'v_xor_b32 v{vT1}, 64, v{vT0}')
    for r in range(4):
        e(f'v_mov_b32 v{vP+r}, -1')
    for r in range(8, 16):
        e(f'v_mov_b32 v{vBC+r}, 0')
    e(f's_lshl_b32 s{sFl}, s{srg}, 4')
    e(f's_mov_b32 s{sCh}, 53248')
    e(f's_mov_b32 s{sRC}, 20000')
    e.wait(lg='*')

def x0dma(k):
    for i in range(13):
        e(f's_add_u32 m0, s{sM0}, {i*4096}')
        e.vmem(f'buffer_load_dwordx4 v{vXd}, {sX0}, {t0(i)} offen lds', f'x0{k}')

def wdma(i, half, l):
    if half == 0:
        e(f's_add_u32 m0, s{sMW}, {i*2048}')
        e.vmem(f'buffer_load_dwordx4 v{vWa}, {sW}, {tW(i)} offen lds', f'W{l}.{i}')
    else:
        e.vmem(f'buffer_load_dwordx4 v{vWb}, {sW}, {tW(i)} offen offset:1024 lds', f'W{l}.{i}')

def poison(vreg, tag):
    for k in range(2):
        e.vmem(f'buffer_store_dwordx4 {vr(vP,4)}, v{vreg}, {sWS}, {tX(0)} offen offset:{k*1024} sc1', tag)

def trread(i, l, part=None):
    ops = []
    for t in range(2):
        for h in range(2):
            ops.append(f'ds_read_b64_tr_b16 {ar(8*i+4*t+2*h,2)}, v{vT0+t} offset:{i*2048+h*512}')
    if part is not None: ops = ops[2*part:2*part+2]
    for o in ops: e.ds(o, f'T{i}')

def xloads(k, l):
    for i in range(1, 13):
        e.vmem(f'buffer_load_dwordx4 {vr(XF(k,i),4)}, v{vXl}, {sWS}, {tX(i)} offen offset:{k*1024} sc1', f'X{k}.{i}')

def unpack(dst, src):
    for q in range(4):
        e(f'v_lshlrev_b32 v{dst+2*q}, 16, v{src+q}')
        e(f'v_and_b32 v{dst+2*q+1}, 0xffff0000, v{src+q}')

def biasload(l):
    if l > 0: e(f'v_add_u32 v{vBias}, 1664, v{vBias}')
    e.vmem(f'buffer_load_dwordx4 {vr(vBr,4)}, v{vBias}, {sB}, 0 offen', f'B{l}')

def mfma(k, i, t, first):
    c = vr(acc(k, t), 16)
    if first: c = vr(vBC, 16) if t == 0 else '0'
    e(f'v_mfma_f32_32x32x16_bf16 {vr(acc(k,t),16)}, {ar(8*i+4*t,4)}, {vr(XF(k,i),4)}, {c}')

def check(k, i, l):
    lab = f'CK{l}_{k}_{i}'
    e.wait(vm=f'X{k}.{i}')
    e(f'{lab}:')
    x = XF(k, i)
    e(f'v_max3_u32 v{vM}, v{x}, v{x+1}, v{x+2}')
    e(f'v_max_u32 v{vM}, v{vM}, v{x+3}')
    e(f'v_cmp_eq_u32 vcc, -1, v{vM}')
    e(f's_cbranch_vccnz RT{l}_{k}_{i}')
    stubs.append(f'RT{l}_{k}_{i}:')
    stubs.append(f's_call_b64 {sRet}, LD{k}_{i}')
    stubs.append(f's_branch {lab}')

def post(k, l):
    srcs = [(1, acc(k, 0, 8)), (2, acc(k, 1, 0)), (3, acc(k, 1, 8))]
    for s, a in srcs:
        for h in range(2):
            e.ds(f'ds_write_b128 v{vEw[s]}, {vr(a+4*h,4)} offset:{(s-1)*8192+k*24576+h*1024}', 'EW')
    e.wait(lg='EW')
    e('s_barrier')
    for h in range(2):
        for s, a in srcs:
            e.ds(f'ds_read_b128 {vr(a+4*h,4)}, v{vEr} offset:{(s-1)*8192+k*24576+h*1024}', f'ER{h}{s}')
    for h in range(2):
        for s, a in srcs:
            e.wait(lg=f'ER{h}{s}')
            for r in range(4*h, 4*h+4):
                e(f'v_add_f32 v{acc(k,0,r)}, v{acc(k,0,r)}, v{a+r}')
        for r in range(4*h, 4*h+4):
            e(f'v_fma_f32 v{xf(k,r)}, v{x0f(k,r)}, v{acc(k,0,r)}, v{xf(k,r)}')
        for q in range(2*h, 2*h+2):
            e(f'v_cvt_pk_bf16_f32 v{XF(k,0,q)}, v{xf(k,2*q)}, v{xf(k,2*q+1)}')
        if l < NL - 1:
            for q in range(2*h, 2*h+2):
                e(f'v_min_u32 v{XF(k,0,q)}, -2, v{XF(k,0,q)}')
    if l < NL - 1:
        e.wait(vm=f'P{l+2}')
        e.vmem(f'buffer_store_dwordx4 {vr(XF(k,0),4)}, v{vXs}, {sWS}, {tX(0)} offen offset:{k*1024} sc1', f'S{k}')
        if k == 1: e(f'v_add_u32 v{vXs}, {REG}, v{vXs}')
    else:
        so = f's{sCh}' if k else '0'
        e.vmem(f'buffer_store_dwordx4 {vr(XF(k,0),4)}, v{vOut}, {sO}, {so} offen', f'S{k}')

def x0read(k):
    for i in range(13):
        e.ds(f'ds_read_b128 {vr(XF(k,i),4)}, v{vX0r} offset:{i*4096}', f'R{i}')

def layer0():
    x0dma(0)
    poison(vXs, 'P1')
    for i in range(13):
        wdma(i, 0, 0); wdma(i, 1, 0)
    biasload(0)
    ts('l0.issued')
    e.wait(vm='P1')
    e('s_barrier')
    ts('l0.x0c0')
    e(f's_cmp_lg_u32 s{sw}, 0')
    e('s_cbranch_scc1 NOFLAG')
    e(f's_add_u32 s3, s{sFl}, s{sc}')
    e(f'v_mov_b32 v{vTmp}, 1')
    e('s_mov_b64 exec, 1')
    e(f'buffer_store_byte v{vTmp}, off, {sD}, s3 sc1')
    e('s_mov_b64 exec, -1')
    e('NOFLAG:')
    x0read(0)
    e(f'v_add_u32 v{vXd}, 53248, v{vXd}')
    e.wait(lg='*')
    e('s_barrier')
    poison(vXp, 'P2')
    e(f'v_add_u32 v{vXp}, {REG}, v{vXp}')
    x0dma(1)
    unpack(x0f(0, 0), XF(0, 0))
    for r in range(8): e(f'v_mov_b32 v{xf(0,r)}, v{x0f(0,r)}')
    e(f'v_add_u32 v{vWa}, {WL}, v{vWa}')
    e(f'v_add_u32 v{vWb}, {WL}, v{vWb}')
    e.wait(vm='B0')
    unpack(vBC, vBr)
    ts('l0.W0')
    for i in range(13): trread(i, 0)
    for i in range(13):
        e.wait(lg=f'T{i}')
        mfma(0, i, 0, i == 0); mfma(0, i, 1, i == 0)
        if i < 7:
            wdma(i, 0, 1); wdma(i, 1, 1)
    ts('l0.B')
    e.wait(vm='x01')
    e('s_barrier')
    x0read(1)
    e.wait(lg='*')
    e('s_barrier')
    ts('l0.x0c1')
    post(0, 0)
    ts('l0.C')
    unpack(x0f(1, 0), XF(1, 0))
    for r in range(8): e(f'v_mov_b32 v{xf(1,r)}, v{x0f(1,r)}')
    e.vmem(f'buffer_load_dwordx4 {vr(vF,4)}, off, {sD}, s{sFl} sc1', 'FL')
    for i in range(13):
        mfma(1, i, 0, i == 0); mfma(1, i, 1, i == 0)
        if i == 0: biasload(1)
        if i < 6:
            wdma(7 + i, 0, 1); wdma(7 + i, 1, 1)
        if i == 6:
            poison(vXp, 'P3')
            e(f'v_add_u32 v{vXp}, {REG}, v{vXp}')
    ts('l0.D')
    e.wait(vm='FL')
    e('FCK:')
    e(f'v_or_b32 v{vF+3}, 0x01010100, v{vF+3}')
    e(f'v_and_b32 v{vF}, v{vF}, v{vF+1}')
    e(f'v_and_b32 v{vF+2}, v{vF+2}, v{vF+3}')
    e(f'v_and_b32 v{vF}, v{vF}, v{vF+2}')
    e(f'v_cmp_ne_u32 vcc, 0x01010101, v{vF}')
    e('s_cbranch_vccnz FRT')
    stubs.extend(['FRT:',
        f'buffer_load_dwordx4 {vr(vF,4)}, off, {sD}, s{sFl} sc1',
        's_waitcnt vmcnt(0)',
        f's_sub_u32 s{sRC}, s{sRC}, 1',
        's_cbranch_scc1 END',
        's_branch FCK'])

def layer(l):
    last = (l == NL - 1)
    xloads(0, l)
    post(1, l - 1)
    ts(f'l{l}.post1')
    if not last:
        e(f'v_add_u32 v{vWa}, {WL}, v{vWa}')
        e(f'v_add_u32 v{vWb}, {WL}, v{vWb}')
    e.wait(vm=f'B{l}')
    unpack(vBC, vBr)
    for i in range(7):
        e.wait(vm=f'W{l}.{i}')
        trread(i, l)
    ts(f'l{l}.A')
    for i in range(13):
        if i > 0: check(0, i, l)
        e.wait(lg=f'T{i}')
        mfma(0, i, 0, i == 0)
        if 1 <= i <= 6:
            e.wait(vm=f'W{l}.{6+i}')
            trread(6 + i, l)
        mfma(0, i, 1, i == 0)
        if not last and i < 7:
            wdma(i, 0, l + 1); wdma(i, 1, l + 1)
    ts(f'l{l}.B')
    xloads(1, l)
    post(0, l)
    ts(f'l{l}.C')
    for i in range(13):
        if i > 0: check(1, i, l)
        mfma(1, i, 0, i == 0)
        mfma(1, i, 1, i == 0)
        if not last:
            if i == 0: biasload(l + 1)
            if i < 6:
                wdma(7 + i, 0, l + 1); wdma(7 + i, 1, l + 1)
            if i == 6 and l + 3 <= 5:
                poison(vXp, f'P{l+3}')
                e(f'v_add_u32 v{vXp}, {REG}, v{vXp}')
    if not last:
        e(f'v_add_u32 v{vXl}, {REG}, v{vXl}')
    ts(f'l{l}.D')

prologue()
layer0()
for l in range(1, NL): layer(l)
post(1, NL - 1)
ts('end')
if TS:
    e.wait(lg='*')
    e(f'v_writelane_b32 v{vTS}, s92, 63')
    e(f'v_writelane_b32 v{vTS}, s{sRC}, 62')
    e(f's_lshl_b32 s3, s2, 2')
    e(f's_add_u32 s3, s3, s{sw}')
    e(f's_lshl_b32 s3, s3, 8')
    e(f's_add_u32 s3, s3, {TSOFF}')
    e(f'v_lshlrev_b32 v0, 2, v0')
    e(f'buffer_store_dword v{vTS}, v0, {sWS}, s3 offen')
e('END:')
e('s_endpgm')
body = pad(e.L)
tail = list(stubs)
for k in range(2):
    for i in range(1, 13):
        tail.append(f'LD{k}_{i}:')
        tail.append(f'buffer_load_dwordx4 {vr(XF(k,i),4)}, v{vXl}, {sWS}, {tX(i)} offen offset:{k*1024} sc1')
    tail += ['s_waitcnt vmcnt(0)', f's_sub_u32 s{sRC}, s{sRC}, 1', 's_cbranch_scc1 END', f's_setpc_b64 {sRet}']

hdr = open(f'cdna_kernels/{NAME}.s.ref').read().split('\n')
o = []
for ln in hdr:
    if ln.startswith('; @launch'):
        o.append('; @launch grid=(208,1,1) block=(256,1,1) lds=163840'); break
    o.append(ln)
o += ['.amdgcn_target "amdgcn-amd-amdhsa--gfx950"', '.text', f'.globl {NAME}_kernel', '.p2align 12', '.p2align 8',
      f'.type {NAME}_kernel,@function', f'{NAME}_kernel:']
for ln in body + tail:
    o.append(ln if ln.endswith(':') else '    ' + ln)
o += ['    s_endpgm', '.section .rodata,"a"', '.p2align 6', f'.amdhsa_kernel {NAME}_kernel',
      '  .amdhsa_next_free_vgpr 360', '  .amdhsa_next_free_sgpr 102', '  .amdhsa_accum_offset 256',
      '  .amdhsa_group_segment_fixed_size 0', '  .amdhsa_kernarg_size 48', '  .amdhsa_user_sgpr_count 2',
      '  .amdhsa_user_sgpr_kernarg_segment_ptr 1', '  .amdhsa_system_sgpr_workgroup_id_x 1', '.end_amdhsa_kernel', '']
open(OUT, 'w').write('\n'.join(o))
if TS:
    open(OUT + '.ts', 'w').write('\n'.join(ts_names))
print('wrote', OUT, len(body) + len(tail), 'lines', 'maxvm', e.maxvm)
```
